```python
import torch

def _softmax(x, axis=-1):
    return torch.softmax(x, dim=axis)
def _gelu(x):
    return torch.nn.functional.gelu(x, approximate="tanh")
def _silu(x):
    return torch.nn.functional.silu(x)
def _sigmoid(x):
    return torch.sigmoid(x)
def _layernorm(x, axis=-1, eps=1e-5):
    m = x.mean(dim=axis, keepdim=True)
    v = x.var(dim=axis, keepdim=True, unbiased=False)
    return (x - m) / torch.sqrt(v + eps)
def _scatter_add(tgt, idx, src, axis=0):
    return tgt.clone().index_add_(axis, idx, src)
def _segment_sum(src, seg, n):
    out = torch.zeros((n,) + src.shape[1:], dtype=src.dtype)
    return out.index_add_(0, seg, src)
def _pad(x, pw):
    flat = tuple(v for pair in reversed(pw) for v in pair)
    return torch.nn.functional.pad(x, flat)

kernel_name = 'recurrent_scan__ssm_conv_s4d__dense_activation_mish__prompt'

def setup_inputs():

    _w = (lambda a: (lambda t: t.to(torch.bfloat16) if t.is_floating_point() else t)(torch.as_tensor(a)))
    def _A_setup():
        Bsz, L, D, N = 1, 2048, 512, 128
        return {
            "u": _w((lambda *s: torch.randn(*s, dtype=torch.bfloat16) * 0.05)(Bsz, L, D)),
            "log_A_real": _w((lambda *s: torch.randn(*s, dtype=torch.bfloat16) * 3.2)(D, N) * 0.5),
            "A_imag": _w((lambda *s: torch.randn(*s, dtype=torch.bfloat16) * 0.2)(D, N) * 3.14),
            "C_real": _w((lambda *s: torch.randn(*s, dtype=torch.bfloat16) * 0.8)(D, N) / N ** 0.5),
            "C_imag": _w((lambda *s: torch.randn(*s, dtype=torch.bfloat16) * 0.8)(D, N) / N ** 0.5),
            "log_dt": _w((lambda *s: torch.randn(*s, dtype=torch.bfloat16) * 0.2)(D) * 0.5 - 4.0),
            "D_skip": _w((lambda *s: torch.randn(*s, dtype=torch.bfloat16) * 0.2)(D)),
        }
    _A_in = _A_setup()

    def _B_setup():
        B, S, D, F = 1, 2048, 512, 1792
        return {
            "x": _w((lambda *s: torch.randn(*s, dtype=torch.bfloat16) * 0.05)(B, S, D)),
            "w1": _w((lambda *s: torch.randn(*s, dtype=torch.bfloat16) * 0.8)(D, F) * (D ** -0.5)),
            "b1": _w((lambda *s: torch.randn(*s, dtype=torch.bfloat16) * 0.4)(F)),
            "w2": _w((lambda *s: torch.randn(*s, dtype=torch.bfloat16) * 0.1)(F, D) * (F ** -0.5)),
        }
    _B_in = _B_setup()

    return {
        "A_u": _A_in["u"],
        "A_log_A_real": _A_in["log_A_real"],
        "A_A_imag": _A_in["A_imag"],
        "A_C_real": _A_in["C_real"],
        "A_C_imag": _A_in["C_imag"],
        "A_log_dt": _A_in["log_dt"],
        "A_D_skip": _A_in["D_skip"],
        "B_x": _B_in["x"],
        "B_w1": _B_in["w1"],
        "B_b1": _B_in["b1"],
        "B_w2": _B_in["w2"],
    }

def reference(A_u, A_log_A_real, A_A_imag, A_C_real, A_C_imag, A_log_dt, A_D_skip, B_x, B_w1, B_b1, B_w2):
    def _A_ref(u, log_A_real, A_imag, C_real, C_imag, log_dt, D_skip):
        L = u.shape[1]
        dt = torch.exp(log_dt)
        A = -torch.exp(log_A_real) + 1j * A_imag
        C = (C_real + 1j * C_imag) * dt[:, None]
        pos = (lambda x, dt: x.to(dt))(torch.arange(L), log_dt.dtype)
        P = torch.exp((A * dt[:, None])[:, :, None] * pos[None, None, :])
        K = 2.0 * torch.einsum("dn,dnl->dl", C, P).real
        L2 = 2 * L
        u_t = (lambda x, *d: x.permute(*d))(u, 0, 2, 1)
        Kf = (lambda x, *a, **k: torch.fft.rfft(x.float(), *a, **k))(K, L2)
        Uf = (lambda x, *a, **k: torch.fft.rfft(x.float(), *a, **k))(u_t, L2)
        y = (lambda x, *a, **k: torch.fft.irfft(x, *a, **k).to(torch.bfloat16))(Uf * Kf[None, :, :], L2)[:, :, :L]
        y = (lambda x, *d: x.permute(*d))(y, 0, 2, 1)
        return y + u * D_skip[None, None, :]

    def _B_ref(x, w1, b1, w2):
        h = torch.einsum("bsd,df->bsf", x, w1) + b1
        sp = torch.log1p(torch.exp(-torch.abs(h))) + torch.where(h > 0, h, torch.zeros_like(h))
        act = h * torch.tanh(sp)
        return torch.einsum("bsf,fd->bsd", act, w2)

    x = A_u
    xn = _layernorm(x, axis=-1)
    s = _A_ref(xn, A_log_A_real, A_A_imag, A_C_real, A_C_imag, A_log_dt, A_D_skip)
    g = _silu(_B_ref(xn, B_w1, B_b1, B_w2))
    return x + s * g
```

```python
import re

TRANS = ('v_exp_f32', 'v_log_f32', 'v_rcp_f32', 'v_rsq_f32', 'v_sqrt_f32', 'v_sin_f32', 'v_cos_f32')


def regs_of(tok):
    tok = tok.strip()
    tok = tok.lstrip('-').strip('|')
    if tok.startswith('abs(') and tok.endswith(')'):
        tok = tok[4:-1]
    m = re.fullmatch(r'([vsa])(\d+)', tok)
    if m:
        return [(m.group(1), int(m.group(2)))]
    m = re.fullmatch(r'([vsa])\[(\d+):(\d+)\]', tok)
    if m:
        return [(m.group(1), i) for i in range(int(m.group(2)), int(m.group(3)) + 1)]
    if tok == 'vcc':
        return [('s', 106), ('s', 107)]
    if tok == 'vcc_lo':
        return [('s', 106)]
    if tok == 'vcc_hi':
        return [('s', 107)]
    if tok == 'm0':
        return [('s', 124)]
    if tok == 'exec':
        return [('s', 126), ('s', 127)]
    return []


def split_ops(rest):
    out, depth, cur = [], 0, ''
    for ch in rest:
        if ch in '[(':
            depth += 1
        elif ch in '])':
            depth -= 1
        if ch == ',' and depth == 0:
            out.append(cur)
            cur = ''
        else:
            cur += ch
    out.append(cur)
    last = out[-1].strip().split(' ')
    mods = last[1:]
    out[-1] = last[0]
    return [o.strip() for o in out], mods


class Ins:
    def __init__(self, text):
        self.text = text
        t = text.split(';')[0].strip()
        parts = t.split(None, 1)
        self.op = parts[0]
        rest = parts[1] if len(parts) > 1 else ''
        self.ops, self.mods = split_ops(rest) if rest else ([], [])
        op = self.op
        self.kind = 'other'
        self.w, self.r = [], []
        R = [regs_of(o) for o in self.ops]
        flat = lambda L: [x for l in L for x in l]
        if op.startswith('v_mfma'):
            self.kind = 'mfma'
            self.w = R[0]
            self.ra, self.rb, self.rc = R[1], R[2], R[3]
            self.r = flat(R[1:])
            self.passes = 8 if '32x32x16' in op else (4 if '16x16x32' in op else (2 if '4x4x4' in op else 16))
        elif op.startswith('v_'):
            self.kind = 'valu'
            if op.startswith('v_permlane') and 'swap' in op:
                self.w = R[0] + R[1]
                self.r = R[0] + R[1]
            elif op.startswith('v_cmp'):
                self.w = R[0]
                self.r = flat(R[1:])
            elif '_co_' in op:
                self.w = R[0] + R[1]
                self.r = flat(R[2:])
            else:
                self.w = R[0]
                self.r = flat(R[1:])
                if op.startswith(('v_fmac', 'v_dot2c', 'v_pk_fmac', 'v_writelane')) or '_dpp' in op or 'sdwa' in op:
                    self.r = self.r + R[0]
            self.trans = op.replace('_e32', '').replace('_e64', '') in TRANS
            self.dpp = '_dpp' in op
            self.lane = op.startswith(('v_readlane', 'v_readfirstlane', 'v_writelane'))
            self.perm = op.startswith('v_permlane')
        elif op.startswith('ds_'):
            self.kind = 'ds'
            if op.startswith('ds_read') or '_rtn' in op or 'permute' in op or 'swizzle' in op:
                self.w = R[0]
                self.r = flat(R[1:])
            else:
                self.r = flat(R)
            if 'addtid' in op:
                self.r = self.r + [('s', 124)]
        elif op.startswith(('buffer_', 'global_')):
            self.kind = 'vmem'
            is_lds = 'lds' in self.mods or '_lds_' in op
            if 'load' in op and not is_lds:
                self.w = R[0]
                self.r = flat(R[1:])
            else:
                self.r = flat(R)
            if is_lds:
                self.r = self.r + [('s', 124)]
            self.wide_store = ('store' in op) and ('x4' in op or 'x3' in op)
            self.data = (R[0] if op.startswith('buffer_') else (R[1] if len(R) > 1 else [])) if 'store' in op else []
        elif op.startswith('s_'):
            self.kind = 'salu'
            if op.startswith(('s_cmp', 's_cbranch', 's_branch', 's_waitcnt', 's_barrier', 's_nop', 's_sleep',
                              's_setprio', 's_endpgm', 's_bitcmp')):
                self.r = flat(R)
            else:
                self.w = R[0] if R else []
                self.r = flat(R[1:])

    def states(self):
        if self.op == 's_nop':
            return int(self.ops[0], 0) + 1
        return 1


def need(p, c):
    n = 0
    pw, cr, cw = set(p.w), set(c.r), set(c.w)
    if p.kind == 'valu':
        vw = {x for x in pw if x[0] in 'va'}
        sw = {x for x in pw if x[0] == 's'}
        if c.kind == 'mfma' and vw & cr:
            n = max(n, 2)
        if c.kind == 'valu':
            if p.trans and vw & cr:
                n = max(n, 1)
            if c.dpp and vw & cr:
                n = max(n, 2)
            if c.perm and vw & cr:
                n = max(n, 2)
            if c.lane and vw & cr:
                n = max(n, 1)
            if sw & cr:
                n = max(n, 4 if c.lane else 2)
            if ('op_sel' in p.text and not p.op.startswith('v_pk') or 'sdwa' in p.op) and vw & (cr | cw):
                n = max(n, 1)
        if c.kind == 'vmem' and sw & cr:
            n = max(n, 5)
        if c.kind in ('salu',) and sw & cr:
            n = max(n, 1)
        if p.trans and c.kind in ('ds', 'vmem') and vw & cr:
            n = max(n, 1)
    if p.kind == 'salu':
        if ('s', 124) in pw and c.kind in ('vmem', 'ds') and ('s', 124) in cr:
            n = max(n, 1)
    if p.kind == 'vmem' and getattr(p, 'wide_store', False):
        if set(p.data) & cw:
            n = max(n, 2 if c.kind == 'valu' else 1)
    if p.kind == 'mfma':
        tab_ab = {2: 5, 4: 8, 8: 12, 16: 20}[p.passes]
        tab_ov = {2: 4, 4: 6, 8: 10, 16: 18}[p.passes]
        if c.kind == 'mfma':
            if pw & (set(c.ra) | set(c.rb)):
                n = max(n, tab_ab)
            if pw & set(c.rc):
                if p.w == c.rc and p.passes == c.passes:
                    n = max(n, 2 if p.passes == 2 else 0)
                else:
                    n = max(n, tab_ov)
            elif pw & cw:
                n = max(n, tab_ov)
        elif c.kind in ('valu', 'ds', 'vmem'):
            if pw & (cr | cw):
                n = max(n, tab_ab)
        if c.kind == 'valu' and set(p.rc) & cw:
            n = max(n, {2: 1, 4: 3, 8: 7, 16: 15}[p.passes])
    return n


class Asm:
    def __init__(self):
        self.lines = []

    def __call__(self, text):
        for l in text.split('\n'):
            l = l.strip()
            if l:
                self.lines.append(l)

    def label(self, n):
        self.lines.append(n + ':')

    def pad(self):
        items = []
        for l in self.lines:
            if l.endswith(':') or l.startswith('.') or l.startswith(';'):
                items.append(l)
            else:
                items.append(Ins(l))
        W = 21
        out = []
        hist = []
        npad = 0
        for it in items:
            if isinstance(it, str):
                out.append(it)
                continue
            req = 0
            dist = 0
            for p in reversed(hist):
                nd = need(p, it)
                if nd - dist > req:
                    req = nd - dist
                dist += p.states()
                if dist >= W:
                    break
            while req > 0:
                k = min(req, 16)
                nop = Ins(f's_nop {k-1}')
                out.append(nop)
                hist.append(nop)
                req -= k
                npad += 1
            out.append(it)
            hist.append(it)
            if it.op in ('s_branch', 's_endpgm'):
                hist = []
            hist = hist[-W - 2:]
        pos = {}
        for i, it in enumerate(out):
            if isinstance(it, str) and it.endswith(':'):
                pos[it[:-1]] = i
        for i, it in enumerate(out):
            if isinstance(it, Ins) and it.op.startswith(('s_branch', 's_cbranch')):
                tgt = it.ops[0]
                pre = []
                k = i
                while k >= 0 and len(pre) < W:
                    if isinstance(out[k], Ins):
                        pre.append(out[k])
                        if out[k].op in ('s_branch', 's_endpgm') and k != i:
                            pre.pop()
                            break
                    k -= 1
                post = []
                k = pos[tgt]
                while k < len(out) and len(post) < W:
                    if isinstance(out[k], Ins):
                        post.append(out[k])
                        if out[k].op in ('s_branch', 's_endpgm'):
                            break
                    k += 1
                d2 = 0
                for c in post:
                    d1 = 0
                    for p in pre:
                        if need(p, c) > d1 + d2:
                            raise RuntimeError(f'hazard across branch to {tgt}: {p.text} -> {c.text} need {need(p,c)} have {d1+d2}')
                        d1 += p.states()
                    d2 += c.states()
        self.npad = npad
        return [x if isinstance(x, str) else '    ' + x.text for x in out]
```

```python
import sys, struct, math
from asmlib import Asm

NAME = 'recurrent_scan__ssm_conv_s4d__dense_activation_mish__prompt'
OPT = dict(ts=0, dumpk=0, expA=0, expB=0, expC=0)
for a in sys.argv[1:]:
    k, v = a.split('=')
    OPT[k] = int(v)
TS = OPT['ts']


def f2u(x):
    return struct.unpack('<I', struct.pack('<f', x))[0]


def hx(x):
    return '0x%08x' % (x & 0xffffffff)


LOG2E = math.log2(math.e)
LN2 = math.log(2.0)
L2E_HI = struct.unpack('<f', struct.pack('<f', LOG2E))[0]
L2E_LO = LOG2E - L2E_HI

FL_STRIDE = 256
FL_XN, FL_ACT, FL_Y, FL_N = 0, 32, 96, 112
WS_STATS = 0x10000
WS_XNT = 0x100000
WS_ST = 0x300000
WS_ACT = 0x500000
WS_TS = 0x1000000
WS_DUMP = 0x1100000
WS_BYTES = 0x10000000
KSCR, KSCR_W, KROW = 0, 4352, 272
XBUF = 0
YBUF = 8704
LNS, LNROW = 17408, 1088
KBUF, KSTR = 17408, 4160
LSTAT = 26112
CSB = LSTAT + 64
B2B = CSB + 512
STAT = B2B + 512
CARRY = STAT + 1024
SYNC = CARRY + 1056
assert SYNC + 16 <= 32768 and STAT % 16 == 0 and CARRY % 16 == 0
RING = 32768
EXCH = 0
STILE = 16384
SPIN = 200000

A = Asm()
nts = [0]


def ts(i):
    if TS:
        A(f's_memtime s[{80+2*i}:{81+2*i}]')


def ts_dump():
    if not TS:
        return
    A('s_waitcnt lgkmcnt(0)')
    A('s_mul_i32 s64, s2, 12\ns_add_u32 s64, s64, s3\ns_lshl_b32 s64, s64, 6')
    A(f's_add_u32 s64, s64, {WS_TS}')
    A('s_mov_b64 exec, 1\nv_mov_b32 v1, s64')
    for i in range(11):
        A(f'v_mov_b32 v2, s{80+2*i}\nbuffer_store_dword v2, v1, s[44:47], 0 offen offset:{4*i}')
    A('s_memrealtime s[64:65]\ns_waitcnt lgkmcnt(0)\nv_mov_b32 v2, s64\nbuffer_store_dword v2, v1, s[44:47], 0 offen offset:44')
    A('v_mov_b32 v2, s78\nbuffer_store_dword v2, v1, s[44:47], 0 offen offset:48')


def srd(base, ptr, nbytes):
    A(f's_mov_b32 s{base}, s{ptr}\ns_mov_b32 s{base+1}, s{ptr+1}\ns_mov_b32 s{base+2}, {hx(nbytes)}\ns_mov_b32 s{base+3}, 0x20000')


uid = [0]


def poll(vaddr, vtmp, mask, target, srdb=44):
    uid[0] += 1
    n = uid[0]
    A(f's_mov_b64 exec, {mask}\ns_mov_b32 s79, {SPIN}')
    A.label(f'L_poll{n}')
    A(f'buffer_load_dword v{vtmp}, v{vaddr}, s[{srdb}:{srdb+3}], 0 offen sc1')
    A('s_waitcnt vmcnt(0)')
    A(f'v_cmp_gt_u32 vcc, {target}, v{vtmp}')
    A('s_sub_u32 s79, s79, 1')
    A(f's_cbranch_scc1 L_polled{n}')
    A('s_cmp_eq_u64 vcc, 0')
    A(f's_cbranch_scc1 L_polled{n}')
    A('s_sleep 1')
    A(f's_branch L_poll{n}')
    A.label(f'L_polled{n}')
    A('s_mov_b64 exec, -1')


def arrive(sidx, vt):
    A(f's_lshl_b32 s{sidx}, s{sidx}, 8')
    A(f's_mov_b64 exec, 1\nv_mov_b32 v{vt}, s{sidx}\nv_mov_b32 v{vt+1}, 1')
    A(f'buffer_atomic_add v{vt+1}, v{vt}, s[44:47], 0 offen sc1')
    A('s_mov_b64 exec, -1')


def bf16r(dst, src):
    A(f'v_cvt_pk_bf16_f32 v{dst}, v{src}, v{src}\nv_and_b32 v{dst}, 0xffff0000, v{dst}')


A(f'{NAME}_kernel:')
if TS:
    A('s_memrealtime s[78:79]')
ts(0)
A('s_cmp_ge_u32 s2, 256\ns_cbranch_scc1 L_end')
A('s_load_dwordx16 s[8:23], s[0:1], 0\ns_load_dwordx8 s[24:31], s[0:1], 64\ns_load_dwordx4 s[32:35], s[0:1], 96')
A('v_lshrrev_b32 v1, 6, v0\nv_and_b32 v0, 63, v0')
A('s_and_b32 s36, s2, 7\ns_lshr_b32 s37, s2, 3')
A('v_readfirstlane_b32 s3, v1')
A('s_and_b32 s4, s37, 3\ns_lshr_b32 s41, s37, 2')
A('s_lshr_b32 s5, s36, 1\ns_lshl_b32 s38, s5, 2\ns_add_u32 s38, s38, s4')
A('s_and_b32 s6, s36, 1\ns_mul_i32 s39, s6, 7\ns_min_u32 s7, s41, 6\ns_add_u32 s39, s39, s7')
A('s_lshl_b32 s40, s36, 2\ns_add_u32 s40, s40, s4')
A('s_lshl_b32 s43, s36, 5\ns_add_u32 s43, s43, s37')
A('s_and_b32 s42, s3, 3')
A('s_cmp_ge_u32 s3, 8\ns_cbranch_scc1 L_D')
A('s_cmp_ge_u32 s3, 4\ns_cbranch_scc1 L_L')

ACC = 64
FR = 128
A('s_setprio 2')
A('v_lshlrev_b32 v1, 4, v0')
A('s_lshl_b32 s64, s43, 13\ns_lshl_b32 s65, s42, 11\ns_add_u32 s64, s64, s65')
A('s_waitcnt lgkmcnt(0)')
srd(48, 8, 2097152)
A('buffer_load_dwordx4 v[8:11], v1, s[48:51], s64 offen')
A('buffer_load_dwordx4 v[12:15], v1, s[48:51], s64 offen offset:1024')
srd(44, 34, WS_BYTES)
A('s_lshr_b32 s66, s42, 1\ns_and_b32 s67, s42, 1')
A('v_bfe_u32 v16, v0, 2, 2')
A('v_and_b32 v17, 3, v0')
A('v_bfe_u32 v18, v0, 4, 1')
A('v_lshrrev_b32 v19, 5, v0')
A('v_and_b32 v20, 31, v0')
A('v_lshl_add_u32 v21, v19, 3, v16\nv_lshlrev_b32 v21, 8, v21')
A('v_lshl_add_u32 v21, v18, 5, v21\nv_lshl_add_u32 v21, v17, 3, v21')
A(f'v_add_u32 v21, {RING+16384}, v21')
A('s_lshl_b32 s68, s66, 1')
A('v_xor_b32 v22, s68, v16\nv_lshl_add_u32 v2, v22, 6, v21')
A('v_xor_b32 v22, 1, v22\nv_lshl_add_u32 v3, v22, 6, v21')
A('s_lshl_b32 s68, s67, 13')
A(f's_add_u32 s68, s68, {RING}')
A('v_lshlrev_b32 v21, 7, v20\nv_add_u32 v21, s68, v21')
A('v_bfe_u32 v22, v0, 1, 3\nv_xor_b32 v22, v22, v19')
for ks in range(4):
    A(f'v_xor_b32 v23, {2*ks}, v22\nv_lshl_add_u32 v{4+ks}, v23, 4, v21')
for i in range(64):
    A(f'v_mov_b32 v{ACC+i}, 0')
A(f'v_mov_b32 v24, 0\nv_lshlrev_b32 v25, 2, v17')
A(f'ds_write_b32 v25, v24 offset:{SYNC}\nds_write_b32 v25, v24 offset:{CARRY}\nds_write_b32 v25, v24 offset:{CARRY+528}')
X0, X1 = 24, 32
A('s_waitcnt vmcnt(0)')
ts(1)
for (src, dst) in ((8, X0), (12, X1)):
    for i in range(4):
        A(f'v_lshlrev_b32 v{dst+2*i}, 16, v{src+i}\nv_and_b32 v{dst+2*i+1}, 0xffff0000, v{src+i}')


def wave_sum2(a, b, sa, sb):
    for ctrl in ('quad_perm:[1,0,3,2] row_mask:0xf', 'quad_perm:[2,3,0,1] row_mask:0xf', 'row_half_mirror row_mask:0xf',
                 'row_mirror row_mask:0xf', 'row_bcast:15 row_mask:0xa', 'row_bcast:31 row_mask:0xc'):
        A(f'v_add_f32_dpp v{a}, v{a}, v{a} {ctrl} bank_mask:0xf')
        A(f'v_add_f32_dpp v{b}, v{b}, v{b} {ctrl} bank_mask:0xf')
    A(f'v_readlane_b32 s{sa}, v{a}, 63\nv_readlane_b32 s{sb}, v{b}, 63')


for (x, t) in ((X0, 40), (X1, 44)):
    A(f'v_pk_add_f32 v[{t}:{t+1}], v[{x}:{x+1}], v[{x+2}:{x+3}]')
    A(f'v_pk_add_f32 v[{t+2}:{t+3}], v[{x+4}:{x+5}], v[{x+6}:{x+7}]')
    A(f'v_pk_add_f32 v[{t}:{t+1}], v[{t}:{t+1}], v[{t+2}:{t+3}]')
    A(f'v_add_f32 v{t}, v{t}, v{t+1}')
wave_sum2(40, 44, 70, 71)
A(f's_mov_b32 s72, {hx(f2u(1.0/512))}')
A('v_mov_b32 v48, s70\nv_mov_b32 v50, s71')
A('v_mul_f32 v48, s72, v48\nv_mul_f32 v50, s72, v50')
for (x, t, mu) in ((X0, 40, 48), (X1, 44, 50)):
    for i in range(4):
        A(f'v_pk_add_f32 v[{52+2*i}:{53+2*i}], v[{x+2*i}:{x+2*i+1}], v[{mu}:{mu+1}] op_sel_hi:[1,0] neg_lo:[0,1] neg_hi:[0,1]')
    A(f'v_pk_mul_f32 v[{t}:{t+1}], v[52:53], v[52:53]')
    for i in range(1, 4):
        A(f'v_pk_fma_f32 v[{t}:{t+1}], v[{52+2*i}:{53+2*i}], v[{52+2*i}:{53+2*i}], v[{t}:{t+1}]')
    A(f'v_add_f32 v{t}, v{t}, v{t+1}')
wave_sum2(40, 44, 70, 71)
A('v_mov_b32 v56, s70\nv_mov_b32 v58, s71')
A('v_mul_f32 v56, s72, v56\nv_mul_f32 v58, s72, v58')
for r in (48, 50, 56, 58):
    bf16r(r, r)
A(f'v_add_f32 v56, {hx(f2u(1e-5))}, v56\nv_add_f32 v58, {hx(f2u(1e-5))}, v58')
bf16r(56, 56); bf16r(58, 58)
A('v_sqrt_f32 v56, v56\nv_sqrt_f32 v58, v58')
bf16r(56, 56); bf16r(58, 58)
A('v_rcp_f32 v56, v56\nv_rcp_f32 v58, v58')
for (x, src, mu, ri) in ((X0, 8, 48, 56), (X1, 12, 50, 58)):
    for i in range(4):
        A(f'v_pk_add_f32 v[{x+2*i}:{x+2*i+1}], v[{x+2*i}:{x+2*i+1}], v[{mu}:{mu+1}] op_sel_hi:[1,0] neg_lo:[0,1] neg_hi:[0,1]')
    for i in range(4):
        A(f'v_cvt_pk_bf16_f32 v{src+i}, v{x+2*i}, v{x+2*i+1}')
    for i in range(4):
        A(f'v_lshlrev_b32 v{x+2*i}, 16, v{src+i}\nv_and_b32 v{x+2*i+1}, 0xffff0000, v{src+i}')
    for i in range(4):
        A(f'v_pk_mul_f32 v[{x+2*i}:{x+2*i+1}], v[{x+2*i}:{x+2*i+1}], v[{ri}:{ri+1}] op_sel_hi:[1,0]')
    for i in range(4):
        A(f'v_cvt_pk_bf16_f32 v{src+i}, v{x+2*i}, v{x+2*i+1}')
A(f's_mul_i32 s68, s42, {2*LNROW}')
A('v_add_u32 v21, s68, v1')
A(f'ds_write_b128 v21, v[8:11] offset:{LNS}\nds_write_b128 v21, v[12:15] offset:{LNS+LNROW}')
A(f'v_mul_f32 v52, {hx(f2u(LOG2E))}, v56\nv_mul_f32 v54, {hx(f2u(LOG2E))}, v58')
A('v_mul_f32 v53, v48, v52\nv_mul_f32 v55, v50, v54')
A('s_lshl_b32 s68, s42, 4\nv_mov_b32 v21, s68')
A(f'ds_write_b128 v21, v[52:55] offset:{LSTAT}')
A('s_waitcnt lgkmcnt(0)')
ts(2)
A('s_barrier')
A('s_cmp_ge_u32 s37, 28\ns_cbranch_scc1 L_Mhelper')


def g1_reads(ks, st):
    b = FR + 16 * st
    return [f'ds_read_b64_tr_b16 v[{b}:{b+1}], v2 offset:{ks*4096}',
            f'ds_read_b64_tr_b16 v[{b+2}:{b+3}], v2 offset:{ks*4096+1024}',
            f'ds_read_b128 v[{b+8}:{b+11}], v{4+ks}',
            f'ds_read_b128 v[{b+12}:{b+15}], v{4+ks} offset:4096',
            f'ds_read_b64_tr_b16 v[{b+4}:{b+5}], v3 offset:{ks*4096}',
            f'ds_read_b64_tr_b16 v[{b+6}:{b+7}], v3 offset:{ks*4096+1024}']


def g1_mfma(st, ft, lt):
    b = FR + 16 * st
    c = ACC + 16 * (2 * ft + lt)
    return f'v_mfma_f32_32x32x16_bf16 v[{c}:{c+15}], v[{b+4*ft}:{b+4*ft+3}], v[{b+8+4*lt}:{b+11+4*lt}], v[{c}:{c+15}]'


for r in g1_reads(0, 0):
    A(r)
A('s_mov_b32 s64, 0\ns_mov_b32 s73, 0x8000')
A('.p2align 3')
A.label('L_g1')
for ks in range(3):
    st = ks & 1
    rd = g1_reads(ks + 1, st ^ 1)
    A('s_waitcnt lgkmcnt(3)')
    A(g1_mfma(st, 0, 0))
    A('s_waitcnt lgkmcnt(2)')
    A(rd[0]); A(rd[1]); A(rd[2])
    A(g1_mfma(st, 0, 1))
    A('s_waitcnt lgkmcnt(3)')
    A(rd[3]); A(rd[4]); A(rd[5])
    A(g1_mfma(st, 1, 0))
    A(g1_mfma(st, 1, 1))
A('s_add_u32 s64, s64, 1\ns_and_b32 s65, s64, 3\ns_cmp_eq_u32 s65, 0')
A(f's_cselect_b32 s65, {hx(-3*32768)}, s73')
A('s_waitcnt lgkmcnt(0)')
A(g1_mfma(1, 0, 0))
for r in range(2, 8):
    A(f'v_add_u32 v{r}, s65, v{r}')
A(g1_mfma(1, 0, 1))
A('s_barrier')
rd = g1_reads(0, 0)
A(rd[0]); A(rd[1]); A(rd[2])
A(g1_mfma(1, 1, 0))
A(rd[3]); A(rd[4]); A(rd[5])
A(g1_mfma(1, 1, 1))
A('s_cmp_lt_u32 s64, 8\ns_cbranch_scc1 L_g1')
ts(3)
A('s_lshl_b32 s68, s67, 9\nv_lshl_add_u32 v21, v20, 3, s68')
A('s_lshl_b32 s68, s66, 8\nv_lshl_add_u32 v22, v19, 4, s68')
A('s_waitcnt lgkmcnt(0)')
A(f'ds_read_b32 v8, v21 offset:{STAT}\nds_read_b32 v10, v21 offset:{STAT+256}')
A(f'ds_read_b32 v56, v21 offset:{STAT+4}\nds_read_b32 v58, v21 offset:{STAT+260}')
A(f'v_mov_b32 v12, 1.0\nv_mov_b32 v13, 1.0\nv_mov_b32 v14, {hx(f2u(-2*LN2))}\nv_mov_b32 v60, {hx(f2u(LN2))}')
A('s_lshl_b32 s68, s38, 2\ns_lshl_b32 s69, s67, 1\ns_add_u32 s68, s68, s69\ns_mul_i32 s68, s68, 112')
A('s_lshl_b32 s69, s39, 3\ns_add_u32 s68, s68, s69\ns_lshl_b32 s69, s66, 2\ns_add_u32 s68, s68, s69')
A(f's_lshl_b32 s68, s68, 10\ns_add_u32 s68, s68, {WS_ACT}')
A(f's_add_u32 s69, s68, {112*1024}')
T = FR
for ft in range(2):
    for g in range(4):
        A(f'ds_read_b128 v[{24+4*g}:{27+4*g}], v22 offset:{CSB+ft*128+g*32}')
        A(f'ds_read_b128 v[{40+4*g}:{43+4*g}], v22 offset:{B2B+ft*128+g*32}')
    A('s_waitcnt lgkmcnt(0)')
    for lt in range(2):
        c = ACC + 16 * (2 * ft + lt)
        S = 8 + 2 * lt
        for half in range(2):
            P = [c + 8 * half + 2 * i for i in range(4)]
            Q = [8 * half + 2 * i for i in range(4)]
            t = [T + 2 * i for i in range(4)]
            u = [T + 8 + 2 * i for i in range(4)]
            o = T + 16 + 4 * ((2 * lt + half) & 1)
            for i in range(4):
                A(f'v_pk_fma_f32 v[{t[i]}:{t[i]+1}], v[{24+Q[i]}:{25+Q[i]}], v[{S+48}:{S+49}], v[{40+Q[i]}:{41+Q[i]}] op_sel_hi:[1,0,1] neg_lo:[0,1,0] neg_hi:[0,1,0]')
            for i in range(4):
                A(f'v_pk_fma_f32 v[{t[i]}:{t[i]+1}], v[{P[i]}:{P[i]+1}], v[{S}:{S+1}], v[{t[i]}:{t[i]+1}] op_sel:[0,0,0] op_sel_hi:[1,0,1]')
            for i in range(4):
                A(f'v_exp_f32 v{u[i]}, v{t[i]}\nv_exp_f32 v{u[i]+1}, v{t[i]+1}')
            for i in range(4):
                A(f'v_pk_add_f32 v[{u[i]}:{u[i]+1}], v[{u[i]}:{u[i]+1}], v[12:13]')
            for i in range(4):
                A(f'v_pk_fma_f32 v[{u[i]}:{u[i]+1}], v[{u[i]}:{u[i]+1}], v[{u[i]}:{u[i]+1}], v[12:13]')
            for i in range(4):
                A(f'v_rcp_f32 v{u[i]}, v{u[i]}\nv_rcp_f32 v{u[i]+1}, v{u[i]+1}')
            for i in range(4):
                A(f'v_pk_fma_f32 v[{u[i]}:{u[i]+1}], v[{u[i]}:{u[i]+1}], v[14:15], v[60:61] op_sel_hi:[1,0,0]')
            for i in range(4):
                A(f'v_pk_mul_f32 v[{t[i]}:{t[i]+1}], v[{t[i]}:{t[i]+1}], v[{u[i]}:{u[i]+1}]')
            for i in range(4):
                A(f'v_cvt_pk_bf16_f32 v{o+i}, v{t[i]}, v{t[i]+1}')
            A(f'buffer_store_dwordx4 v[{o}:{o+3}], v1, s[44:47], s{68+lt} offen offset:{(2*ft+half)*1024} sc1')
ts(4)
A('s_lshl_b32 s68, s38, 1\ns_add_u32 s68, s68, s67\ns_lshl_b32 s68, s68, 1\ns_add_u32 s68, s68, s6')
A(f's_add_u32 s68, s68, {FL_ACT}')
A('s_waitcnt vmcnt(0)')
ts(5)
arrive(68, 21)
A('s_branch L_G2')

A.label('L_Mhelper')
srd(52, 28, 1835008)
A('s_lshl_b32 s64, s36, 2\ns_add_u32 s64, s64, s4\ns_lshl_b32 s64, s64, 2\ns_add_u32 s64, s64, s42')
A('s_mul_i32 s64, s64, 14336')
A('v_lshlrev_b32 v21, 7, v0')
A('buffer_load_dword v22, v21, s[52:55], s64 offen')
A('s_add_u32 s64, s64, 8192\ns_mov_b32 exec_hi, 0xffff')
A('buffer_load_dword v23, v21, s[52:55], s64 offen')
A('s_mov_b64 exec, -1')
for i in range(8):
    A('s_barrier')
A('s_waitcnt vmcnt(0)')

A.label('L_G2')
G2A = 8
G2F = 40
XR = 56
G2B = 64
NB = 24
A('s_lshl_b32 s68, s40, 1\ns_add_u32 s68, s68, s67\ns_lshl_b32 s70, s68, 15')
A('s_lshl_b32 s69, s41, 7\ns_add_u32 s70, s70, s69\ns_lshl_b32 s69, s66, 6\ns_add_u32 s70, s70, s69')
A('v_lshlrev_b32 v4, 10, v20\nv_lshl_add_u32 v5, v19, 3, v4\nv_lshl_add_u32 v4, v19, 4, v4')
for g in range(4):
    A(f'buffer_load_dwordx2 v[{XR+2*g}:{XR+2*g+1}], v5, s[48:51], s70 offen offset:{16*g}')
A('v_lshl_add_u32 v21, v19, 2, v16\nv_lshlrev_b32 v21, 7, v21')
A('v_lshl_add_u32 v21, v18, 5, v21\nv_lshl_add_u32 v21, v17, 3, v21')
A('v_lshrrev_b32 v22, 1, v16')
A('v_xor_b32 v23, s67, v22\nv_lshl_add_u32 v6, v23, 6, v21')
A(f's_lshl_b32 s69, s66, 12\ns_add_u32 s69, s69, {STILE}\nv_add_u32 v6, s69, v6')
A(f's_lshl_b32 s69, s66, 14\ns_add_u32 s69, s69, {RING}\nv_add_u32 v21, s69, v21')
A('v_xor_b32 v22, s66, v22\nv_lshl_add_u32 v2, v22, 6, v21')
A('v_xor_b32 v22, 1, v22\nv_lshl_add_u32 v3, v22, 6, v21')
A('v_add_u32 v7, 4096, v1')
for i in range(32):
    A(f'v_mov_b32 v{G2A+i}, 0')
A('s_mul_i32 s68, s68, 112\ns_mul_i32 s69, s66, 56\ns_add_u32 s68, s68, s69')
A(f's_lshl_b32 s68, s68, 10\ns_add_u32 s68, s68, {WS_ACT}')
A('s_min_u32 s71, s41, 6')
A('s_lshl_b32 s69, s40, 1\ns_add_u32 s69, s69, s66')
A(f's_add_u32 s69, s69, {FL_ACT}\ns_lshl_b32 s69, s69, 8\nv_mov_b32 v160, s69')
poll(160, 161, '1', 14)
ts(6)


def next_chunk():
    A('s_lshl_b32 s72, s71, 13\ns_add_u32 s72, s72, s68')
    A('s_add_u32 s71, s71, 1\ns_cmp_eq_u32 s71, 7\ns_cselect_b32 s71, 0, s71')


def bload(n):
    st = n % 8
    if st == 0:
        next_chunk()
    r = G2B + 4 * (n % NB)
    A(f'buffer_load_dwordx4 v[{r}:{r+3}], v{1 if st < 4 else 7}, s[44:47], s72 offen offset:{(st%4)*1024} sc1')


for n in range(NB):
    bload(n)
A('s_barrier')
ts(7)


def g2_reads(n):
    st = n % 8
    b = G2F + 8 * (n & 1)
    return [f'ds_read_b64_tr_b16 v[{b}:{b+1}], v2 offset:{st*2048}',
            f'ds_read_b64_tr_b16 v[{b+2}:{b+3}], v2 offset:{st*2048+1024}',
            f'ds_read_b64_tr_b16 v[{b+4}:{b+5}], v3 offset:{st*2048}',
            f'ds_read_b64_tr_b16 v[{b+6}:{b+7}], v3 offset:{st*2048+1024}']


for r in g2_reads(0):
    A(r)
for n in range(56):
    b = G2F + 8 * (n & 1)
    B = G2B + 4 * (n % NB)
    issued = min(56, NB + n)
    vm = issued - n - 1
    last = (n % 8 == 7)
    m0 = f'v_mfma_f32_32x32x16_bf16 v[{G2A}:{G2A+15}], v[{b}:{b+3}], v[{B}:{B+3}], v[{G2A}:{G2A+15}]'
    m1 = f'v_mfma_f32_32x32x16_bf16 v[{G2A+16}:{G2A+31}], v[{b+4}:{b+7}], v[{B}:{B+3}], v[{G2A+16}:{G2A+31}]'
    if not last:
        rd = g2_reads(n + 1)
        A(f's_waitcnt vmcnt({vm}) lgkmcnt(2)')
        A(m0)
        A(rd[0]); A(rd[1])
        A('s_waitcnt lgkmcnt(2)')
        A(m1)
        A(rd[2]); A(rd[3])
    else:
        A(f's_waitcnt vmcnt({vm}) lgkmcnt(0)')
        A(m0)
        if n < 55:
            ch = n // 8 + 1
            d = 0x8000 if ch % 4 else -3 * 32768
            A(f'v_add_u32 v2, {hx(d)}, v2\nv_add_u32 v3, {hx(d)}, v3')
            A('s_barrier')
            rd = g2_reads(n + 1)
            A(rd[0]); A(rd[1])
            A(m1)
            A(rd[2]); A(rd[3])
        else:
            A(m1)
    if n + NB < 56:
        bload(n + NB)
ts(8)
A('s_lshl_b32 s69, s42, 12\nv_add_u32 v160, s69, v1')
A('s_xor_b32 s69, s69, 0x2000\nv_add_u32 v161, s69, v1')
for g in range(4):
    A(f'ds_write_b128 v160, v[{G2A+16+4*g}:{G2A+19+4*g}] offset:{EXCH+g*1024}')
srd(52, 30, 2097152)
A('s_waitcnt lgkmcnt(0)')
A('s_barrier')
E = 64
for g in range(4):
    A(f'ds_read_b128 v[{E+4*g}:{E+4*g+3}], v161 offset:{EXCH+g*1024}')
for g in range(4):
    A(f'ds_read_b64_tr_b16 v[{E+16+2*g}:{E+17+2*g}], v6 offset:{g*1024}')
A(f'v_mov_b32 v40, {hx(f2u(-LOG2E))}\nv_mov_b32 v42, 1.0')
U = E + 24
XF = E + 40
SF = E + 56
for i in range(8):
    A(f'v_lshlrev_b32 v{XF+2*i}, 16, v{XR+i}\nv_and_b32 v{XF+2*i+1}, 0xffff0000, v{XR+i}')
A('s_waitcnt lgkmcnt(4)')
for i in range(8):
    A(f'v_pk_add_f32 v[{G2A+2*i}:{G2A+2*i+1}], v[{G2A+2*i}:{G2A+2*i+1}], v[{E+2*i}:{E+2*i+1}]')
for i in range(8):
    A(f'v_pk_mul_f32 v[{U+2*i}:{U+2*i+1}], v[{G2A+2*i}:{G2A+2*i+1}], v[40:41] op_sel:[0,0] op_sel_hi:[1,0]')
for i in range(16):
    A(f'v_exp_f32 v{U+i}, v{U+i}')
for i in range(8):
    A(f'v_pk_add_f32 v[{U+2*i}:{U+2*i+1}], v[{U+2*i}:{U+2*i+1}], v[42:43] op_sel_hi:[1,0]')
for i in range(16):
    A(f'v_rcp_f32 v{U+i}, v{U+i}')
A('s_waitcnt lgkmcnt(0)')
for i in range(8):
    A(f'v_lshlrev_b32 v{SF+2*i}, 16, v{E+16+i}\nv_and_b32 v{SF+2*i+1}, 0xffff0000, v{E+16+i}')
for i in range(8):
    A(f'v_pk_mul_f32 v[{U+2*i}:{U+2*i+1}], v[{U+2*i}:{U+2*i+1}], v[{G2A+2*i}:{G2A+2*i+1}]')
for i in range(8):
    A(f'v_pk_fma_f32 v[{U+2*i}:{U+2*i+1}], v[{U+2*i}:{U+2*i+1}], v[{SF+2*i}:{SF+2*i+1}], v[{XF+2*i}:{XF+2*i+1}]')
for i in range(8):
    A(f'v_cvt_pk_bf16_f32 v{E+i}, v{U+2*i}, v{U+2*i+1}')
for gp in range(2):
    o = E + 4 * gp
    A(f'v_permlane32_swap_b32 v{o}, v{o+2}\nv_permlane32_swap_b32 v{o+1}, v{o+3}')
    A(f'buffer_store_dwordx4 v[{o}:{o+3}], v4, s[52:55], s70 offen offset:{32*gp}')
ts(9)
if TS:
    A('s_waitcnt vmcnt(0)')
    ts(10)
ts_dump()
A('s_endpgm')

A.label('L_D')
A('s_setprio 3')
A('v_lshrrev_b32 v1, 3, v0\nv_and_b32 v2, 7, v0\nv_lshrrev_b32 v3, 4, v0')
A('v_xor_b32 v4, v2, v3\nv_lshlrev_b32 v4, 4, v4\nv_lshl_add_u32 v4, v1, 10, v4')
A('v_xor_b32 v5, 64, v4')
A('v_and_b32 v6, 15, v0\nv_lshlrev_b32 v7, 2, v3\nv_xor_b32 v6, v6, v7\nv_lshlrev_b32 v6, 4, v6')
A('v_mul_u32_u24 v7, 3584, v3\nv_add_u32 v6, v6, v7')
A('v_and_b32 v7, 1, v3\nv_lshlrev_b32 v7, 2, v7\nv_xor_b32 v7, v7, v2\nv_lshlrev_b32 v7, 4, v7')
A('v_lshl_add_u32 v8, v1, 7, v7\nv_lshl_add_u32 v7, v1, 10, v7')
A('s_lshl_b32 s64, s4, 1\ns_add_u32 s64, s64, s41\ns_and_b32 s65, s5, 1\ns_add_u32 s64, s64, s65\ns_and_b32 s64, s64, 7')
A('s_lshl_b32 s66, s38, 17\ns_lshl_b32 s65, s42, 15\ns_add_u32 s66, s66, s65')
A(f's_mul_i32 s67, s42, {16*3584}\ns_lshl_b32 s65, s39, 8\ns_add_u32 s67, s67, s65')
A(f's_lshl_b32 s68, s42, 12\ns_add_u32 s68, s68, {RING}')
A('s_mov_b32 s69, 0')
A('s_waitcnt lgkmcnt(0)')
srd(48, 8, 2097152)
srd(52, 24, 1835008)
A('s_cmp_ge_u32 s37, 28\ns_cbranch_scc1 L_Dhelper')
A.label('L_Dg1')
A('s_lshl_b32 s70, s64, 7\ns_add_u32 s70, s70, s66')
A(f's_mul_i32 s71, s64, {64*3584}\ns_add_u32 s71, s71, s67')
A('s_and_b32 s72, s69, 3\ns_lshl_b32 s72, s72, 15\ns_add_u32 m0, s72, s68')
for q in range(4):
    A(f'buffer_load_dwordx4 v{4+(q&1)}, s[48:51], s70 offen offset:{q*1024} lds')
    if q < 3:
        A(f's_add_u32 s70, s70, {8192-1024}')
A('s_add_u32 m0, m0, 0x4000')
A('s_add_u32 s64, s64, 1')
for q in range(4):
    A(f'buffer_load_dwordx4 v6, s[52:55], s71 offen offset:{q*1024} lds')
    if q < 3:
        A(f's_add_u32 s71, s71, {4*3584-1024}')
A('s_and_b32 s64, s64, 7\ns_add_u32 s69, s69, 1')
A('s_cmp_eq_u32 s69, 1\ns_cbranch_scc1 L_Dg1')
A('s_waitcnt vmcnt(8)')
A('s_barrier')
A('s_cmp_lt_u32 s69, 8\ns_cbranch_scc1 L_Dg1')
A('s_waitcnt vmcnt(0)')
A('s_barrier')
A('s_branch L_Dw2')
A.label('L_Dhelper')
for i in range(8):
    A('s_barrier')
A.label('L_Dw2')
ts(1)
srd(56, 28, 1835008)
srd(44, 34, WS_BYTES)
A('s_lshr_b32 s65, s42, 1\ns_mul_i32 s66, s65, 896\ns_and_b32 s65, s42, 1\ns_lshl_b32 s65, s65, 6\ns_add_u32 s66, s66, s65')
A('s_lshl_b32 s66, s66, 10\ns_lshl_b32 s65, s41, 7\ns_add_u32 s66, s66, s65')
A(f's_lshl_b32 s68, s42, 13\ns_add_u32 s68, s68, {RING}')
A('s_min_u32 s64, s41, 6\ns_mov_b32 s69, 0')
A('s_barrier')
A.label('L_Dc')
A('s_lshl_b32 s70, s64, 17\ns_add_u32 s70, s70, s66')
A('s_and_b32 s72, s69, 3\ns_lshl_b32 s72, s72, 15\ns_add_u32 m0, s72, s68')
A('s_add_u32 s64, s64, 1')
for q in range(8):
    A(f'buffer_load_dwordx4 v7, s[56:59], s70 offen offset:{(q%4)*1024} lds')
    if q == 3:
        A(f's_add_u32 s70, s70, {8192+3072}\ns_add_u32 m0, m0, 0x1000')
    elif q < 7:
        A(f's_add_u32 s70, s70, {8192-1024}')
A('s_cmp_eq_u32 s64, 7\ns_cselect_b32 s64, 0, s64\ns_add_u32 s69, s69, 1')
A('s_cmp_lt_u32 s69, 4\ns_cbranch_scc1 L_Dc')
A('s_cmp_eq_u32 s69, 7\ns_cbranch_scc1 L_Dtail')
A('s_cmp_lg_u32 s69, 4\ns_cbranch_scc1 L_Dn')
A('s_waitcnt vmcnt(0)')
ts(2)
A('s_barrier')
A.label('L_Dn')
A('s_barrier')
A('s_branch L_Dc')
A.label('L_Dtail')
A('s_waitcnt vmcnt(16)')
A('s_barrier')
A('s_lshl_b32 s65, s41, 1\ns_and_b32 s67, s40, 1\ns_add_u32 s65, s65, s67')
A(f's_add_u32 s65, s65, {FL_Y}\ns_lshl_b32 s65, s65, 8\nv_mov_b32 v9, s65')
poll(9, 10, '1', 64)
ts(3)
A(f's_lshl_b32 s70, s40, 16\ns_lshl_b32 s65, s41, 13\ns_add_u32 s70, s70, s65\ns_lshl_b32 s65, s42, 11\ns_add_u32 s70, s70, s65')
A(f's_add_u32 s70, s70, {WS_ST}\ns_add_u32 m0, s65, {STILE}')
A('buffer_load_dwordx4 v8, s[44:47], s70 offen sc1 lds')
A('buffer_load_dwordx4 v8, s[44:47], s70 offen offset:1024 sc1 lds')
A('s_barrier')
A('s_barrier')
A('s_waitcnt vmcnt(0)')
A('s_barrier')
ts_dump()
A('s_endpgm')

A.label('L_L')
LP, HP, BF, KD, CF, CA, ON, TM = 16, 48, 76, 108, 124, 140, 144, 148
A('s_lshr_b32 s66, s42, 1\ns_and_b32 s67, s42, 1')
A('s_lshl_b32 s68, s36, 6\ns_lshl_b32 s65, s37, 1\ns_add_u32 s68, s68, s65')
A('s_add_u32 s69, s68, s66')
A('s_lshl_b32 s65, s69, 8\ns_lshl_b32 s64, s67, 7\ns_add_u32 s65, s65, s64')
A('v_lshl_add_u32 v1, v0, 1, s65')
A('s_lshl_b32 s65, s69, 1\nv_mov_b32 v2, s65')
A('s_lshl_b32 s65, s39, 8\ns_lshl_b32 s64, s42, 6\ns_add_u32 s65, s65, s64')
A('v_and_b32 v3, 31, v0\nv_lshl_add_u32 v4, v3, 1, s65')
A('s_getpc_b64 s[60:61]')
A.label('L_pc')
A(f's_sub_u32 s60, s60, L_pc-{NAME}_kernel\ns_subb_u32 s61, s61, 0')
A('s_lshl_b32 s64, s37, 2\ns_add_u32 s64, s64, s42\ns_lshl_b32 s64, s64, 8')
A('v_lshl_add_u32 v5, v0, 7, s64')
A(f'v_cmp_gt_u32 vcc, L_code_end-{NAME}_kernel, v5')
A('s_and_b64 s[62:63], vcc, 3')
A('s_waitcnt lgkmcnt(0)')
A(f'global_load_ushort v{TM}, v2, s[18:19]')
A(f'global_load_ushort v{TM+1}, v1, s[10:11]')
A(f'global_load_ushort v{TM+2}, v1, s[12:13]')
A(f'global_load_ushort v{TM+3}, v1, s[14:15]')
A(f'global_load_ushort v{TM+4}, v1, s[16:17]')
A(f'global_load_ushort v14, v2, s[20:21]')
A(f'global_load_ushort v15, v4, s[26:27]')
A('s_cmp_eq_u64 s[62:63], 0\ns_cbranch_scc1 L_nopf')
A('s_mov_b64 exec, s[62:63]')
A('global_load_dword v6, v5, s[60:61]')
A('s_mov_b64 exec, -1')
A.label('L_nopf')
srd(44, 34, WS_BYTES)
srd(48, 32, 256)
A('s_cmp_lg_u32 s2, 224\ns_cbranch_scc1 L_noreset\ns_cmp_lg_u32 s42, 0\ns_cbranch_scc1 L_noreset')
A('v_lshlrev_b32 v7, 8, v0\nv_mov_b32 v8, 0\ns_movk_i32 s64, 0x4000')
A('buffer_store_dword v8, v7, s[44:47], 0 offen sc1')
A('buffer_store_dword v8, v7, s[44:47], s64 offen sc1')
A('s_waitcnt vmcnt(0)')
A('s_mov_b64 exec, 1\nv_mov_b32 v9, 1')
A('buffer_store_dword v9, v8, s[48:51], 0 offen sc1')
A('s_mov_b64 exec, -1')
A.label('L_noreset')
A('v_bfe_u32 v7, v0, 2, 2\nv_and_b32 v8, 3, v0\nv_lshrrev_b32 v9, 4, v0\nv_lshrrev_b32 v10, 5, v0\nv_and_b32 v11, 15, v0')
A('v_and_b32 v12, 1, v9\nv_cmp_eq_u32 vcc, v11, v12\nv_mov_b32 v13, 0x3f803f80')
A(f'v_cndmask_b32 v{ON}, 0, v13, vcc')
for i in range(1, 4):
    A(f'v_mov_b32 v{ON+i}, v{ON}')
for i in range(4):
    A(f'v_mov_b32 v{CA+i}, 0')
A('v_lshl_add_u32 v2, v10, 3, v7\nv_lshlrev_b32 v2, 8, v2\nv_xor_b32 v13, s42, v7\nv_lshl_add_u32 v2, v13, 6, v2')
A(f'v_lshl_add_u32 v2, v12, 5, v2\nv_lshl_add_u32 v2, v8, 3, v2\nv_add_u32 v2, {RING+16384}, v2')
A(f's_mul_i32 s70, s42, {KSCR_W}')
A(f'v_mul_u32_u24 v4, {KROW}, v11\nv_lshl_add_u32 v4, v10, 4, v4\nv_add_u32 v4, s70, v4')
tabA = [0, 1, 2, 3, 4, 5, 6, 7, 8, 8, 9, 10, 10, 10, 11, 12]
tabB = [0, 1, 3, 4, 1, 2, 4, 5, 6, 7, 8, 9, 10, 11, 12, 13]
pk = lambda t: sum(v << (4 * i) for i, v in enumerate(t))
A(f's_mov_b32 s72, {hx(pk(tabA))}\ns_mov_b32 s73, {hx(pk(tabA)>>32)}\ns_mov_b32 s74, {hx(pk(tabB))}\ns_mov_b32 s75, {hx(pk(tabB)>>32)}')
A(f'v_lshlrev_b32 v13, 2, v11\nv_lshrrev_b64 v[{TM+6}:{TM+7}], v13, s[72:73]\nv_lshrrev_b64 v[{TM+8}:{TM+9}], v13, s[74:75]')
A(f'v_cmp_eq_u32 vcc, 1, v12\nv_cndmask_b32 v5, v{TM+6}, v{TM+8}, vcc\nv_and_b32 v5, 15, v5')
A(f'v_mul_u32_u24 v5, {KROW}, v5\nv_lshl_add_u32 v5, v10, 4, v5\nv_add_u32 v5, s70, v5')
A(f's_mov_b32 s72, {hx(f2u(L2E_HI))}\ns_mov_b32 s73, {hx(f2u(L2E_LO))}\ns_mov_b32 s74, {hx(f2u(LN2))}')
A('s_waitcnt vmcnt(0)')
ts(1)
for i in range(5):
    A(f'v_lshlrev_b32 v{TM+i}, 16, v{TM+i}')
A('v_lshlrev_b32 v14, 16, v14\nv_lshlrev_b32 v15, 16, v15')
A(f'v_mul_f32 v15, s72, v15\ns_lshl_b32 s64, s42, 7\nv_lshl_add_u32 v3, v3, 2, s64')
A(f'ds_write_b32 v3, v15 offset:{B2B}')
W = BF
for i in range(2):
    x = TM + i
    A(f'v_mul_f32 v{W}, s72, v{x}\nv_fma_f32 v{W+1}, v{x}, s72, -v{W}\nv_fma_f32 v{W+1}, v{x}, s73, v{W+1}')
    A(f'v_exp_f32 v{W}, v{W}\nv_mul_f32 v{W+1}, s74, v{W+1}\nv_fma_f32 v{x}, v{W}, v{W+1}, v{W}')
    bf16r(x, x)
A(f'v_mul_f32 v{TM+1}, v{TM+1}, v{TM}\nv_mul_f32 v{TM+2}, v{TM+2}, v{TM}')
A(f'v_mul_f32 v{TM+1}, {hx(f2u(-LOG2E))}, v{TM+1}\nv_mul_f32 v{TM+2}, 0.15915494, v{TM+2}')
Z1, Z8, Z256 = W, W + 4, W + 8
TT = W + 12
PA, PB = W + 16, W + 20
P04, P26, P48, PT = W + 24, W + 28, W + 32, W + 36


def zpow(p, dx, dy):
    A(f'v_mul_f32 v{TT}, {hx(f2u(p))}, v{TM+1}\nv_mul_f32 v{TT+1}, {hx(f2u(p))}, v{TM+2}')
    A(f'v_exp_f32 v{TT}, v{TT}\nv_fract_f32 v{TT+1}, v{TT+1}')
    A(f'v_cos_f32 v{dx}, v{TT+1}\nv_sin_f32 v{dy}, v{TT+1}')
    A(f'v_mul_f32 v{dx}, v{dx}, v{TT}\nv_mul_f32 v{dy}, v{dy}, v{TT}')


def cmul2(d, a, z):
    assert d != a
    A(f'v_pk_mul_f32 v[{d}:{d+1}], v[{a}:{a+1}], v[{z}:{z+1}] op_sel_hi:[1,0]')
    A(f'v_pk_mul_f32 v[{d+2}:{d+3}], v[{a+2}:{a+3}], v[{z}:{z+1}] op_sel_hi:[1,0]')
    A(f'v_pk_fma_f32 v[{d}:{d+1}], v[{a+2}:{a+3}], v[{z+2}:{z+3}], v[{d}:{d+1}] op_sel_hi:[1,0,1] neg_lo:[0,1,0] neg_hi:[0,1,0]')
    A(f'v_pk_fma_f32 v[{d+2}:{d+3}], v[{a}:{a+1}], v[{z+2}:{z+3}], v[{d+2}:{d+3}] op_sel_hi:[1,0,1]')


def packl(d, p, k):
    A(f'v_cvt_pk_bf16_f32 v{d}, v{p+k}, v{p+2+k}')


def packc(d, p, k):
    A(f'v_cvt_pk_bf16_f32 v{d}, v{p+k}, -v{p+2+k}')


zpow(8.0, Z8, Z8 + 2)
zpow(128.0, PA + 1, PA + 3)
A(f'v_mov_b32 v{PA}, 1.0\nv_mov_b32 v{PA+2}, 0')
cur, oth = PA, PB
for j in range(16):
    if j:
        cmul2(oth, cur, Z8)
        cur, oth = oth, cur
    packl(LP + j, cur, 0)
    packl(LP + 16 + j, cur, 1)
zpow(1.0, Z1, Z1 + 2)
zpow(256.0, Z256, Z256 + 2)
zpow(4.0, PT, PT + 2)
A(f'v_add_f32 v{TM}, v{TM}, v{TM}\nv_mul_f32 v{P04}, v{TM+3}, v{TM}\nv_mul_f32 v{P04+2}, v{TM+4}, v{TM}')
A(f'v_mul_f32 v{P04+1}, v{P04}, v{PT}\nv_mul_f32 v{P04+3}, v{P04+2}, v{PT}')
A(f'v_fma_f32 v{P04+1}, -v{P04+2}, v{PT+2}, v{P04+1}\nv_fma_f32 v{P04+3}, v{P04}, v{PT+2}, v{P04+3}')
packc(HP + 0, P04, 0); packc(HP + 4, P04, 1)
cmul2(PA, P04, Z1); packc(HP + 1, PA, 0); packc(HP + 5, PA, 1)
cmul2(P26, PA, Z1); packc(HP + 2, P26, 0); packc(HP + 6, P26, 1)
cmul2(PA, P26, Z1); packc(HP + 3, PA, 0); packc(HP + 7, PA, 1)
cmul2(P48, PA, Z1)
cmul2(PT, P26, Z256); packc(HP + 9, PT, 0); packc(HP + 11, PT, 1)
cmul2(PA, P04, Z256); packc(HP + 8, PA, 0); packc(HP + 10, PA, 1)
cmul2(PB, P48, Z256); packc(HP + 12, PB, 1)
cmul2(P04, PA, Z256); packc(HP + 13, P04, 0); packc(HP + 14, P04, 1)
cmul2(P48, PB, Z256); packc(HP + 15, P48, 1)
cmul2(PA, P04, Z256); packc(HP + 16, PA, 0); packc(HP + 17, PA, 1)
cmul2(PB, P48, Z256); packc(HP + 18, PB, 1)
A(f'v_mov_b32 v{PB}, v{PA}\nv_mov_b32 v{PB+2}, v{PA+2}')
cur, oth = PB, PA
for i in range(4):
    cmul2(oth, cur, Z256)
    cur, oth = oth, cur
    packc(HP + 19 + i, cur, 0); packc(HP + 23 + i, cur, 1)
ts(2)


def kpass(src, nrows, dst, areg, hi):
    A('s_mov_b32 m0, s70')
    for r in range(nrows):
        A(f'ds_write_addtid_b32 v{src+r} offset:{KSCR+r*KROW}')
    m = '0xffff0000' if hi else '0xffff'
    A(f's_mov_b32 exec_lo, {m}\ns_mov_b32 exec_hi, {m}')
    for s in range(8):
        A(f'ds_read_b128 v[{dst+4*s}:{dst+4*s+3}], v{areg} offset:{KSCR+s*32}')
    A('s_mov_b64 exec, -1')


def cs_stage(s):
    for ks in range(4):
        A(f'ds_read_b64_tr_b16 v[{CF+4*ks}:{CF+4*ks+1}], v2 offset:{ks*4096}')
        A(f'ds_read_b64_tr_b16 v[{CF+4*ks+2}:{CF+4*ks+3}], v2 offset:{ks*4096+1024}')
    d = 0x8000 if (s + 1) % 4 else -3 * 32768
    A(f'v_add_u32 v2, {hx(d)}, v2')
    A('s_waitcnt lgkmcnt(0)')
    for ks in range(4):
        A(f'v_mfma_f32_16x16x32_bf16 v[{CA}:{CA+3}], v[{ON}:{ON+3}], v[{CF+4*ks}:{CF+4*ks+3}], v[{CA}:{CA+3}]')


kpass(LP, 16, BF, 4, False)
A('s_waitcnt lgkmcnt(0)')
A('s_barrier')
A(f'v_mul_u32_u24 v6, {LNROW}, v7\nv_lshl_add_u32 v6, v9, 5, v6\nv_lshl_add_u32 v6, v8, 3, v6')
A('s_lshl_b32 s64, s42, 8\nv_add_u32 v6, s64, v6')
for s in range(2):
    for t in range(2):
        A(f'ds_read_b64_tr_b16 v[{TM+4*s+2*t}:{TM+4*s+2*t+1}], v6 offset:{LNS+t*4*LNROW+s*128}')
A(f'v_lshlrev_b32 v1, 4, v0\nv_and_b32 v6, 48, v1')
A(f'ds_read_b128 v[{TM+8}:{TM+11}], v6 offset:{LSTAT}')
A(f's_lshl_b32 s64, s43, 13\ns_lshl_b32 s65, s42, 11\ns_add_u32 s64, s64, s65\ns_add_u32 s64, s64, {WS_XNT}')
A(f's_lshl_b32 s65, s42, 14\ns_lshl_b32 s71, s43, 6\ns_add_u32 s65, s65, s71\ns_add_u32 s65, s65, {WS_STATS}')
A('v_mov_b32 v13, 0')
A('s_waitcnt lgkmcnt(0)')
A(f'buffer_store_dwordx4 v[{TM}:{TM+3}], v1, s[44:47], s64 offen sc1')
A(f'buffer_store_dwordx4 v[{TM+4}:{TM+7}], v1, s[44:47], s64 offen offset:1024 sc1')
A('s_mov_b64 exec, 15')
A(f'buffer_store_dwordx4 v[{TM+8}:{TM+11}], v1, s[44:47], s65 offen sc1')
A('s_mov_b64 exec, -1')
kpass(LP + 16, 16, BF, 4, True)
cs_stage(0)
A('s_barrier')
poll(13, TM + 12, '1', 1, srdb=48)
A(f's_lshl_b32 s64, s42, 3\ns_add_u32 s64, s64, s36')
arrive(64, TM + 12)
ts(3)
cs_stage(1)
A('s_barrier')
kpass(HP, 13, LP, 5, False)
cs_stage(2)
A('s_barrier')
kpass(HP + 13, 14, LP, 5, True)
cs_stage(3)
for s in range(8):
    c = '0' if s == 0 else f'v[{KD}:{KD+15}]'
    A(f'v_mfma_f32_32x32x16_bf16 v[{KD}:{KD+15}], v[{LP+4*s}:{LP+4*s+3}], v[{BF+4*s}:{BF+4*s+3}], {c}')
A('s_barrier')
cs_stage(4)
A('v_add_u32 v6, s70, v1')
A('s_cmp_eq_u32 s67, 0\ns_cbranch_scc1 L_kx0')
for g in range(4):
    A(f'ds_write_b128 v6, v[{KD+4*g}:{KD+4*g+3}] offset:{KSCR+g*1024}')
A('s_waitcnt lgkmcnt(0)')
A.label('L_kx0')
A('s_barrier')
cs_stage(5)
A('s_cmp_lg_u32 s67, 0\ns_cbranch_scc1 L_kx1')
for g in range(4):
    A(f'ds_read_b128 v[{BF+4*g}:{BF+4*g+3}], v6 offset:{KSCR+KSCR_W+g*1024}')
A(f's_mul_i32 s64, s66, {KSTR}\nv_and_b32 v3, 31, v0\nv_lshlrev_b32 v3, 4, v3\nv_lshl_add_u32 v3, v10, 3, v3\nv_add_u32 v3, s64, v3')
A('v_cmp_eq_u32 vcc, 0, v0\nv_cndmask_b32 v14, 0, v14, vcc')
A('s_waitcnt lgkmcnt(0)')
for i in range(8):
    A(f'v_pk_add_f32 v[{KD+2*i}:{KD+2*i+1}], v[{KD+2*i}:{KD+2*i+1}], v[{BF+2*i}:{BF+2*i+1}]')
A(f'v_add_f32 v{KD}, v{KD}, v14')
O = LP
A(f'v_cvt_pk_bf16_f32 v{O}, v{KD}, v{KD+1}\nv_cvt_pk_bf16_f32 v{O+1}, v{KD+2}, v{KD+3}')
A(f'v_cvt_pk_bf16_f32 v{O+2}, v{KD+4}, v{KD+5}\nv_cvt_pk_bf16_f32 v{O+3}, v{KD+6}, v{KD+7}')
A(f'ds_write_b64 v3, v[{O}:{O+1}] offset:{KBUF+32}\nds_write_b64 v3, v[{O+2}:{O+3}] offset:{KBUF+32+512}')
A('v_cmp_eq_u32 vcc, 1, v10')
for i in range(2):
    a, b = KD + 8 + 2 * i, KD + 9 + 2 * i
    A(f'v_cndmask_b32 v{TM}, v{a}, v{b}, vcc')
    A(f'v_cvt_pk_bf16_f32 v{O+4+2*i}, v{a}, v{a}\nv_cvt_pk_bf16_f32 v{O+5+2*i}, v{TM}, v{b}')
    A(f'ds_write_b64 v3, v[{O+4+2*i}:{O+5+2*i}] offset:{KBUF+32+1024+512*i}')
for i in range(4):
    A(f'v_cvt_pk_bf16_f32 v{O+8+2*i}, v{KD+12+i}, v{KD+12+i}\nv_mov_b32 v{O+9+2*i}, v{O+8+2*i}')
    A(f'ds_write_b64 v3, v[{O+8+2*i}:{O+9+2*i}] offset:{KBUF+32+2048+512*i}')
A('s_mov_b32 exec_lo, 0x55555555\ns_mov_b32 exec_hi, 0')
for i in range(4):
    A(f'ds_write_b16 v3, v{O+8+2*i} offset:{KBUF+32+2048+512*i+8}')
A('s_mov_b64 exec, 3')
A(f'v_mov_b32 v{TM}, 0\nv_mov_b32 v{TM+1}, 0\nv_mov_b32 v{TM+2}, 0\nv_mov_b32 v{TM+3}, 0')
A(f'ds_write_b128 v3, v[{TM}:{TM+3}] offset:{KBUF}')
A('s_mov_b64 exec, -1')
A('s_waitcnt lgkmcnt(0)')
A.label('L_kx1')
A('s_barrier')
ts(4)
cs_stage(6)
A('s_lshl_b32 s64, s5, 11\nv_lshl_add_u32 v6, v0, 8, s64')
poll(6, TM, '0xff', 32)
ts(5)
A('v_lshrrev_b32 v6, 1, v0\nv_lshlrev_b32 v6, 13, v6\nv_and_b32 v13, 1, v0\nv_lshl_add_u32 v6, v13, 4, v6')
A(f's_lshl_b32 s64, s42, 19\ns_lshl_b32 s65, s68, 4\ns_add_u32 s64, s64, s65\ns_add_u32 s64, s64, {WS_XNT}')
A(f's_lshl_b32 s65, s42, 11\ns_add_u32 m0, s65, {XBUF+512}')
A(f's_add_u32 s65, s64, {32*8192-1024}')
A('buffer_load_dwordx4 v6, s[44:47], s64 offen sc1 lds')
A('buffer_load_dwordx4 v6, s[44:47], s65 offen offset:1024 sc1 lds')
A(f's_lshl_b32 s64, s5, 14\ns_lshl_b32 s65, s38, 10\ns_add_u32 s64, s64, s65\ns_lshl_b32 s65, s42, 8\ns_add_u32 s64, s64, s65')
A(f's_add_u32 s64, s64, {WS_STATS}\ns_add_u32 m0, s65, {STAT}')
A('v_lshlrev_b32 v6, 2, v0')
A('buffer_load_dword v6, s[44:47], s64 offen sc1 lds')
A(f'v_mov_b32 v13, 0\ns_lshl_b32 s64, s42, 7\nv_and_b32 v6, 127, v6\nv_add_u32 v6, s64, v6')
A(f'ds_write_b32 v6, v13 offset:{XBUF}')
A('s_barrier')
cs_stage(7)
A('s_lshl_b32 s64, s42, 7\nv_lshl_add_u32 v6, v0, 2, s64')
A('s_mov_b64 exec, 0xffff')
A(f'ds_write_b32 v6, v{CA} offset:{CSB}\nds_write_b32 v6, v{CA+1} offset:{CSB+64}')
A('s_mov_b64 exec, -1')
KF, YA, XF_ = 16, 80, 144
A(f's_mul_i32 s64, s66, {KSTR}\ns_add_u32 s64, s64, {KBUF+8}')
A('v_add_u32 v2, v7, v8\nv_lshlrev_b32 v2, 3, v2\nv_lshl_add_u32 v2, v9, 6, v2\nv_add_u32 v2, s64, v2')
A('v_lshlrev_b32 v3, 4, v8\nv_lshlrev_b32 v4, 5, v9\nv_sub_u32 v3, v3, v4\nv_lshlrev_b32 v4, 2, v7\nv_sub_u32 v3, v3, v4\nv_add_u32 v3, 0x7c, v3')
A('v_lshrrev_b32 v4, 3, v3\nv_and_b32 v3, 7, v3\nv_lshlrev_b32 v3, 1, v3\nv_lshl_add_u32 v3, v4, 5, v3')
A(f's_lshl_b32 s64, s66, 4\ns_lshl_b32 s65, s67, 8\ns_add_u32 s64, s64, s65\nv_add_u32 v3, s64, v3')
A('s_waitcnt vmcnt(0) lgkmcnt(0)')
A('s_barrier')
ts(6)
if OPT['dumpk']:
    A(f's_mul_i32 s64, s66, {KSTR}\nv_add_u32 v6, s64, v1')
    A(f's_lshl_b32 s64, s69, 12\ns_add_u32 s64, s64, {WS_DUMP}')
    for e in range(4):
        A(f'ds_read_b128 v[{TM}:{TM+3}], v6 offset:{KBUF+32+e*1024}\ns_waitcnt lgkmcnt(0)')
        A(f'buffer_store_dwordx4 v[{TM}:{TM+3}], v1, s[44:47], s64 offen offset:{e*1024}\ns_waitcnt vmcnt(0)')


def xread(a):
    b = XF_ + 4 * (a % 4)
    A(f'ds_read_b64_tr_b16 v[{b}:{b+1}], v3 offset:{XBUF+a*512+64}')
    A(f'ds_read_b64_tr_b16 v[{b+2}:{b+3}], v3 offset:{XBUF+a*512}')


ZC = (lambda k: '0')
if OPT['expB']:
    for i in range(64): A(f'v_mov_b32 v{YA+i}, 0')
    ZC = (lambda k: f'v[{YA+4*k}:{YA+4*k+3}]')
xread(0)
for m in range(16):
    A(f'ds_read_b64_tr_b16 v[{KF+4*m}:{KF+4*m+1}], v2 offset:{m*256}')
    A(f'ds_read_b64_tr_b16 v[{KF+4*m+2}:{KF+4*m+3}], v2 offset:{m*256+32}')
    if m >= 4:
        A('s_waitcnt lgkmcnt(8)')
        k = m - 4
        A(f'v_mfma_f32_16x16x32_bf16 v[{YA+4*k}:{YA+4*k+3}], v[{XF_}:{XF_+3}], v[{KF+4*k}:{KF+4*k+3}], {ZC(k)}')
xread(1); xread(2)
A('s_waitcnt lgkmcnt(4)')
for k in range(12, 16):
    A(f'v_mfma_f32_16x16x32_bf16 v[{YA+4*k}:{YA+4*k+3}], v[{XF_}:{XF_+3}], v[{KF+4*k}:{KF+4*k+3}], {ZC(k)}')
for a in range(1, 16):
    if a + 2 < 16:
        xread(a + 2)
        A('s_waitcnt lgkmcnt(4)')
    elif a + 1 < 16:
        A('s_waitcnt lgkmcnt(2)')
    else:
        A('s_waitcnt lgkmcnt(0)')
    b = XF_ + 4 * (a % 4)
    for m in range(16 - a):
        q = a + m
        A(f'v_mfma_f32_16x16x32_bf16 v[{YA+4*q}:{YA+4*q+3}], v[{b}:{b+3}], v[{KF+4*m}:{KF+4*m+3}], v[{YA+4*q}:{YA+4*q+3}]')
ts(7)
for lvl in (2, 1, 0):
    for q in range(16):
        A(f'v_add_f32_dpp v{YA+4*q+lvl}, v{YA+4*q+lvl+1}, v{YA+4*q+lvl} wave_shr:1 row_mask:0xf bank_mask:0xf bound_ctrl:0')
A(f's_mul_i32 s64, s66, 528\ns_lshl_b32 s65, s67, 4\ns_add_u32 s64, s64, s65\nv_mov_b32 v4, s64\nv_lshl_add_u32 v5, v0, 2, s64')
A('s_mov_b32 exec_lo, 0\ns_mov_b32 exec_hi, 0x80000000')
for q in range(16):
    A(f'ds_write_b128 v4, v[{YA+4*q}:{YA+4*q+3}] offset:{CARRY+16+32*q}')
A('s_lshl_b32 s64, s42, 2\nv_mov_b32 v4, s64\nv_mov_b32 v6, 1\ns_xor_b32 s64, s64, 4\nv_mov_b32 v7, s64')
A(f'ds_write_b32 v4, v6 offset:{SYNC}')
A(f's_mov_b32 s79, {SPIN}')
A.label('L_pair')
A(f'ds_read_b32 v6, v7 offset:{SYNC}\ns_waitcnt lgkmcnt(0)\nv_readfirstlane_b32 s64, v6')
A('s_sub_u32 s79, s79, 1\ns_cbranch_scc1 L_paired')
A('s_cmp_eq_u32 s64, 0\ns_cbranch_scc1 L_pair')
A.label('L_paired')
A('s_mov_b64 exec, 7')
for q in range(16):
    A(f'ds_read_b32 v{KF+q}, v5 offset:{CARRY+4+32*q}')
A('s_waitcnt lgkmcnt(0)')
for q in range(16):
    A(f'v_add_f32 v{YA+4*q}, v{YA+4*q}, v{KF+q}')
A('s_mov_b64 exec, -1')
A('s_lshl_b32 s64, s42, 11\nv_lshl_add_u32 v4, v0, 1, s64\nv_add_u32 v5, s64, v1')
for q in range(0, 16, 2):
    A(f'v_cvt_pk_bf16_f32 v{KF+q}, v{YA+4*q}, v{YA+4*q+4}')
    A(f'ds_write_b16 v4, v{KF+q} offset:{YBUF+q*128}\nds_write_b16_d16_hi v4, v{KF+q} offset:{YBUF+q*128+128}')
A(f'ds_read_b128 v[{KF+16}:{KF+19}], v5 offset:{YBUF}\nds_read_b128 v[{KF+20}:{KF+23}], v5 offset:{YBUF+1024}')
A('v_lshrrev_b32 v6, 3, v0\nv_lshlrev_b32 v6, 17, v6\nv_and_b32 v7, 7, v0\nv_lshl_add_u32 v6, v7, 4, v6')
A(f's_lshl_b32 s64, s67, 16\ns_lshl_b32 s65, s69, 7\ns_add_u32 s64, s64, s65\ns_add_u32 s64, s64, {WS_ST}\ns_add_u32 s65, s64, 0x100000')
A('s_waitcnt lgkmcnt(0)')
A(f'buffer_store_dwordx4 v[{KF+16}:{KF+19}], v6, s[44:47], s64 offen sc1')
A(f'buffer_store_dwordx4 v[{KF+20}:{KF+23}], v6, s[44:47], s65 offen sc1')
A(f's_lshl_b32 s64, s36, 1\ns_add_u32 s64, s64, s67\ns_add_u32 s64, s64, {FL_Y}')
ts(8)
A('s_waitcnt vmcnt(0)')
arrive(64, 8)
ts(9)
ts_dump()
A.label('L_end')
A('s_endpgm')
A.label('L_code_end')

body = A.pad()
hdr = open('cdna_kernels/' + NAME + '.s.ref').read().split('\n')
out = []
for l in hdr:
    if l.startswith('; @launch'):
        out.append('; @launch grid=(256,1,1) block=(768,1,1) lds=163840')
        break
    out.append(l)
out += ['.amdgcn_target "amdgcn-amd-amdhsa--gfx950"', '.text', f'.globl {NAME}_kernel', '.p2align 8',
        f'.type {NAME}_kernel,@function']
out += body
out += ['.section .rodata,"a"', '.p2align 6', f'.amdhsa_kernel {NAME}_kernel',
        '  .amdhsa_next_free_vgpr 168', '  .amdhsa_next_free_sgpr 102', '  .amdhsa_accum_offset 168',
        '  .amdhsa_group_segment_fixed_size 0', '  .amdhsa_kernarg_size 112', '  .amdhsa_user_sgpr_count 2',
        '  .amdhsa_user_sgpr_kernarg_segment_ptr 1', '  .amdhsa_system_sgpr_workgroup_id_x 1', '.end_amdhsa_kernel']
print('\n'.join(out))
sys.stderr.write(f'pads inserted: {A.npad}\n')
```
